```python
import torch

def _softmax(x, axis=-1):
    return torch.softmax(x, dim=axis)

def _gelu(x):
    return torch.nn.functional.gelu(x, approximate='tanh')

def _silu(x):
    return torch.nn.functional.silu(x)

def _sigmoid(x):
    return torch.sigmoid(x)

def _layernorm(x, axis=-1, eps=1e-05):
    m = x.mean(dim=axis, keepdim=True)
    v = x.var(dim=axis, keepdim=True, unbiased=False)
    return (x - m) / torch.sqrt(v + eps)

def _scatter_add(tgt, idx, src, axis=0):
    return tgt.clone().index_add_(axis, idx, src)

def _segment_sum(src, seg, n):
    out = torch.zeros((n,) + src.shape[1:], dtype=src.dtype)
    return out.index_add_(0, seg, src)

def _pad(x, pw):
    flat = tuple((v for pair in reversed(pw) for v in pair))
    return torch.nn.functional.pad(x, flat)
kernel_name = 'standalone__kv_cache_quant_pre_rope_vs_post_rope__sampling'

def setup_inputs():

    _w = lambda a: (lambda t: t.to(torch.bfloat16) if t.is_floating_point() else t)(torch.as_tensor(a))
    B, Sq, Skv = (8, 4, 8192)
    H, Dh0 = (8, 128)
    G = 64 if 64 > 0 else Dh0
    G = max(2, G // 2 * 2)
    Dh = max(G, Dh0 // G * G)
    Skv = max(Skv, Sq)
    ng = Dh // G
    bits = 8 if 8 > 1 else 4
    bits = max(2, min(8, bits))
    qmax = (1 << bits) - 1
    half = Dh // 2
    inv = 1.0 / 10000.0 ** (torch.arange(half) / max(1, half))
    ang_k = torch.arange(Skv)[:, None] * inv[None, :]
    ang_q = torch.arange(Skv - Sq, Skv)[:, None] * inv[None, :]
    kc = torch.cat([torch.cos(ang_k), torch.cos(ang_k)], dim=-1)
    ks = torch.cat([torch.sin(ang_k), torch.sin(ang_k)], dim=-1)
    qc = torch.cat([torch.cos(ang_q), torch.cos(ang_q)], dim=-1)
    qs = torch.cat([torch.sin(ang_q), torch.sin(ang_q)], dim=-1)
    qk_i = torch.randint(0, qmax + 1, (B, H, Skv, Dh)).to(torch.int32)
    qv_i = torch.randint(0, qmax + 1, (B, H, Skv, Dh)).to(torch.int32)
    ksc = torch.abs((lambda *s: torch.randn(*s, dtype=torch.bfloat16) * 0.05)(B, H, Skv, ng)) * 0.1 + 0.01
    kzp = torch.full((B, H, Skv, ng), qmax / 2.0)
    vsc = torch.abs((lambda *s: torch.randn(*s, dtype=torch.bfloat16) * 0.05)(B, H, Skv, ng)) * 0.1 + 0.01
    vzp = torch.full((B, H, Skv, ng), qmax / 2.0)
    return {'q': _w((lambda *s: torch.randn(*s, dtype=torch.bfloat16) * 0.8)(B, H, Sq, Dh) * 0.5), 'qk': _w(qk_i), 'k_scales': _w(ksc), 'k_zeros': _w(kzp), 'qv': _w(qv_i), 'v_scales': _w(vsc), 'v_zeros': _w(vzp), 'q_cos': _w(qc), 'q_sin': _w(qs), 'k_cos': _w(kc), 'k_sin': _w(ks)}

def reference(q, qk, k_scales, k_zeros, qv, v_scales, v_zeros, q_cos, q_sin, k_cos, k_sin):
    B, H, Sq, Dh = q.shape
    ng = k_scales.shape[-1]
    G = Dh // ng
    half = Dh // 2
    ks = (lambda x, n, axis: torch.repeat_interleave(x, n, dim=axis))(k_scales, G, axis=-1)
    kz = (lambda x, n, axis: torch.repeat_interleave(x, n, dim=axis))(k_zeros, G, axis=-1)
    k = ((lambda x, dt: x.to(dt))(qk, q.dtype) - kz) * ks
    vs = (lambda x, n, axis: torch.repeat_interleave(x, n, dim=axis))(v_scales, G, axis=-1)
    vz = (lambda x, n, axis: torch.repeat_interleave(x, n, dim=axis))(v_zeros, G, axis=-1)
    v = ((lambda x, dt: x.to(dt))(qv, q.dtype) - vz) * vs
    k1 = k[..., :half].clone()
    k2 = k[..., half:].clone()
    krh = torch.concatenate([-k2, k1], axis=-1)
    kr = k * k_cos[None, None, :, :] + krh * k_sin[None, None, :, :]
    q1 = q[..., :half].clone()
    q2 = q[..., half:].clone()
    qrh = torch.concatenate([-q2, q1], axis=-1)
    qr = q * q_cos[None, None, :, :] + qrh * q_sin[None, None, :, :]
    logits = torch.einsum('bhqd,bhkd->bhqk', qr, kr) * float(Dh) ** (-0.5)
    attn = _softmax(logits, axis=-1)
    out = torch.einsum('bhqk,bhkd->bhqd', attn, v)
    return out
```

```python
import re

def regs(spec):
    if spec is None: return []
    if isinstance(spec,(list,tuple)):
        out=[]
        for s in spec: out+=regs(s)
        return out
    s=spec.strip().lstrip('-')
    if s.startswith('abs(') : s=s[4:-1]
    if s=='vcc': return [('s',106),('s',107)]
    if s=='exec': return [('x',0)]
    if s=='m0': return [('m',0)]
    m=re.fullmatch(r'([vas])(\d+)',s)
    if m: return [(m.group(1),int(m.group(2)))]
    m=re.fullmatch(r'([vas])\[(\d+):(\d+)\]',s)
    if m: return [(m.group(1),i) for i in range(int(m.group(2)),int(m.group(3))+1)]
    return []

TRANS=('v_exp_f32','v_log_f32','v_rcp_f32','v_rsq_f32','v_sqrt_f32','v_sin_f32','v_cos_f32')

class Ins:
    __slots__=('text','kind','w','r','c','passes','dpp','trans','perm')
    def __init__(s,text,kind,w=(),r=(),c=(),passes=0,dpp=(),trans=False,perm=False):
        s.text=text; s.kind=kind; s.w=set(w); s.r=set(r); s.c=set(c); s.passes=passes; s.dpp=set(dpp); s.trans=trans; s.perm=perm

class Emitter:
    def __init__(s):
        s.lines=[]
        s.hist=[]
        s.pos=0
        s.nops=0
        s.count=0
    def raw(s,text):
        s.lines.append(text)
    def comment(s,t): s.lines.append('    ; '+t)
    def label(s,name, conservative=True):
        s.lines.append(name+':')
    def settle(s,n=None):
        need=0
        for p,i in s.hist:
            d=s.pos-p-1
            if i.kind=='mfma': need=max(need,(8 if i.passes==4 else 12)-d)
            elif i.kind=='valu': need=max(need,(5 if any(k=='s' for k,_ in i.w) else 2)-d)
        if n is not None: need=max(need,n)
        s._nop(need)
    def _nop(s,n):
        while n>0:
            k=min(n,16)
            s.lines.append(f'    s_nop {k-1}')
            s.pos+=k; n-=k; s.nops+=k
    def _need(s,ins):
        need=0
        for p,i in s.hist:
            d=s.pos-p-1
            if d>=12: continue
            req=0
            if i.kind=='valu':
                wv={x for x in i.w if x[0] in 'va'}
                ws={x for x in i.w if x[0]=='s'}
                if ins.kind=='mfma' and wv&(ins.r|ins.c): req=max(req,2)
                if ins.dpp and wv&ins.dpp: req=max(req,2)
                if ins.perm and wv&(ins.r|ins.w): req=max(req,2)
                if ins.kind=='valu' and 'readfirstlane' in ins.text and wv&ins.r: req=max(req,1)
                if ins.kind=='valu' and 'v_readlane' in ins.text and wv&ins.r: req=max(req,1)
                if i.trans and ins.kind in('valu','mfma') and not ins.trans and wv&(ins.r|ins.c): req=max(req,1)
                if i.trans and ins.kind in('vmem','ds') and wv&ins.r: req=max(req,1)
                if ins.kind=='valu' and ws&ins.r: req=max(req,2)
                if ins.kind=='vmem' and ws&ins.r: req=max(req,5)
                if ins.kind=='salu' and ws&ins.r: req=max(req,1)
            if i.kind=='mfma':
                lat = 8 if i.passes==4 else 12
                D=i.w
                if ins.kind=='mfma':
                    if D&ins.r: req=max(req,lat)
                    if D&ins.c and not (ins.c==D and ins.passes==i.passes): req=max(req,6 if i.passes==4 else 10)
                    if D&ins.w and not (ins.c==D): req=max(req,lat)
                elif ins.kind in('valu','vmem','ds'):
                    if D&(ins.r|ins.w): req=max(req,lat)
                if ins.kind=='valu' and i.c&ins.w: req=max(req,3 if i.passes==4 else 7)
            if i.kind in('vmem','ds') and getattr(i,'passes',0)>=3 and ins.kind=='valu':
                if i.r&ins.w: req=max(req,2)
            if i.kind=='salu' and ('m',0) in i.w and ins.kind=='vmem' and 'lds' in ins.text: req=max(req,1)
            need=max(need,req-d)
        return need
    def add(s,ins):
        n=s._need(ins)
        if n>0: s._nop(n)
        s.lines.append('    '+ins.text)
        s.hist.append((s.pos,ins)); s.pos+=1; s.count+=1
        s.hist=[(p,i) for p,i in s.hist if s.pos-p<=16]
    def valu(s,op,dst,*src,mods='',extra_w=(),extra_r=()):
        txt=f"{op} {dst}"+''.join(f', {x}' for x in src)+(f' {mods}' if mods else '')
        w=regs(dst)+regs(extra_w); r=[]
        for x in src: r+=regs(x)
        r+=regs(extra_r)
        if op.startswith('v_fmac') or 'v_pk_fmac' in op: r+=regs(dst)
        dpp=set()
        if '_dpp' in op:
            dpp=set(regs(src[0]));
            if 'bank_mask:0xf' not in mods or op.startswith('v_mov'): r+=regs(dst)
        base=op.replace('_e32','').replace('_e64','')
        perm = 'permlane' in op
        if perm: w+=regs(src[0]); r+=regs(dst)
        s.add(Ins(txt,'valu',w=w,r=r,dpp=dpp,trans=base in TRANS,perm=perm))
    def mfma(s,op,d,a,b,c,passes=4):
        s.add(Ins(f'{op} {d}, {a}, {b}, {c}','mfma',w=regs(d),r=regs(a)+regs(b),c=regs(c),passes=passes))
    def salu(s,op,*args,w=None):
        txt=f"{op} "+', '.join(str(a) for a in args)
        if w is None: w=regs(args[0]) if args and not op.startswith(('s_cmp','s_waitcnt','s_barrier','s_cbranch','s_branch','s_nop','s_setprio','s_sleep')) else []
        r=[]
        for a in args[1:]: r+=regs(str(a))
        s.add(Ins(txt.strip(),'salu',w=w,r=r))
    def wait(s,vm=None,lgkm=None):
        t='s_waitcnt'
        if vm is not None: t+=f' vmcnt({vm})'
        if lgkm is not None: t+=f' lgkmcnt({lgkm})'
        s.add(Ins(t,'salu'))
    def vmem(s,text,w=(),r=(),ndw=0):
        s.add(Ins(text,'vmem',w=regs(w),r=regs(r),passes=ndw))
    def ds(s,text,w=(),r=(),ndw=0):
        s.add(Ins(text,'ds',w=regs(w),r=regs(r),passes=ndw))
    def text(s): return '\n'.join(s.lines)+'\n'
```

```python
import sys, math, argparse
from emit import Emitter
NAME='standalone__kv_cache_quant_pre_rope_vs_post_rope__sampling'

HEADER = open('cdna_kernels/'+NAME+'.s.ref').read().split('; Override launch geometry')[0]

def vr(a,n=1): return f'v{a}' if n==1 else f'v[{a}:{a+n-1}]'
def ar(a,n=1): return f'a{a}' if n==1 else f'a[{a}:{a+n-1}]'
def sr(a,n=1): return f's{a}' if n==1 else f's[{a}:{a+n-1}]'

def build(opt):
    e=Emitter()
    NT = ' nt' if opt.nt else ''
    vLane=0
    vKo,vVo,vTo,vSK,vSV,vSelG,vSelZ = 1,2,3,4,5,6,7
    KR=8
    VR=72
    TC=136
    TS=152
    SC=168
    tmp=184
    vSp=tmp
    vCl=200; vCh=204; vSl=208; vSh=212
    vU=216
    vVs=220
    vP=224
    vZ=226
    vM=228
    vMx=229
    vL=230
    vA=232
    vT0=240
    aO=0
    aZ=32
    aQ=36
    NAG=40
    sK,sV,sCos,sSin,sKs,sKz,sVs,sVz = 8,12,16,20,24,28,32,36
    sPtr=40
    pQ,pQK,pKS,pKZ,pQV,pVS,pVZ,pQC,pQS,pKC,pKSn,pOut,pDbg,pWs = [sPtr+2*i for i in range(14)]
    sWave=68; sOffK=69; sOffV=70; sOffT=71; sOffS=72; sCnt=73
    sC=74; sThr=75; sHiMask=76
    sValid=78
    sG1=80
    sTmp=82
    sWG=2
    NWG=256

    A=e.raw
    A(HEADER.rstrip())
    A('; Override launch geometry by editing the next line (default: block=256,')
    A(f'; @launch grid=({NWG},1,1) block=(256,1,1) lds={opt.lds}')
    A('.amdgcn_target "amdgcn-amd-amdhsa--gfx950"')
    A('.text')
    A(f'.globl {NAME}_kernel')
    A('.p2align 8')
    A(f'.type {NAME}_kernel,@function')
    A(f'{NAME}_kernel:')

    e.salu('s_cmp_ge_u32', sr(sWG), NWG)
    e.salu('s_cbranch_scc1','L_end')
    e.salu('s_load_dwordx16', sr(sPtr,16), 's[0:1]', '0')
    e.salu('s_load_dwordx8', sr(sPtr+16,8), 's[0:1]', '64')
    e.salu('s_load_dwordx4', sr(sPtr+24,4), 's[0:1]', '96')
    e.valu('v_lshrrev_b32', vr(vT0), '6', 'v0')
    e.valu('v_and_b32', vr(vLane), '63', 'v0')
    e.valu('v_readfirstlane_b32', sr(sWave), vr(vT0))
    f0,f1,f2 = vT0+1,vT0+2,vT0+3
    e.valu('v_and_b32', vr(f0), '3', vr(vLane))
    e.valu('v_bfe_u32', vr(f1), vr(vLane), '2', '2')
    e.valu('v_lshrrev_b32', vr(f2), '4', vr(vLane))
    e.valu('v_lshlrev_b32', vr(vKo), '11', vr(f1))
    e.valu('v_lshl_add_u32', vr(vKo), vr(f2), '6', vr(vKo))
    e.valu('v_lshl_add_u32', vr(vKo), vr(f0), '4', vr(vKo))
    e.valu('v_and_b32', vr(vT0+4), '15', vr(vLane))
    e.valu('v_lshlrev_b32', vr(vVo), '11', vr(f2))
    e.valu('v_lshl_add_u32', vr(vVo), vr(vT0+4), '4', vr(vVo))
    e.valu('v_lshlrev_b32', vr(vTo), '10', vr(f1))
    e.valu('v_lshl_add_u32', vr(vTo), vr(f2), '5', vr(vTo))
    e.valu('v_lshl_add_u32', vr(vTo), vr(f0), '3', vr(vTo))
    e.valu('v_lshlrev_b32', vr(vSK), '4', vr(f1))
    e.valu('v_lshlrev_b32', vr(vSV), '4', vr(f2))
    vQo=vT0+5
    e.valu('v_lshlrev_b32', vr(vQo), '8', vr(f0))
    e.valu('v_lshl_add_u32', vr(vQo), vr(f2), '5', vr(vQo))
    e.valu('v_lshl_add_u32', vr(vQo), vr(f1), '3', vr(vQo))
    e.valu('v_and_b32', vr(vT0+6), '1', vr(f1))
    e.valu('v_mul_u32_u24', vr(vT0+6), '0x20200', vr(vT0+6))
    e.valu('v_lshlrev_b32', vr(vT0+6), '8', vr(vT0+6))
    e.valu('v_add_u32', vr(vSelG), '0x01000c0c', vr(vT0+6))
    e.valu('v_and_b32', vr(vT0+6), '1', vr(vLane))
    e.valu('v_mul_u32_u24', vr(vT0+6), '0x20202', vr(vT0+6))
    e.valu('v_lshlrev_b32', vr(vT0+7), '8', vr(vT0+6))
    e.valu('v_and_b32', vr(vT0+6), '0xff', vr(vT0+6))
    e.valu('v_add_u32', vr(vT0+6), vr(vT0+6), vr(vT0+7))
    e.valu('v_add_u32', vr(vSelZ), '0x05040100', vr(vT0+6))
    cval = (1.0/math.sqrt(128.0))*math.log2(math.e)
    import struct
    f2u=lambda x: struct.unpack('<I',struct.pack('<f',x))[0]
    e.salu('s_mov_b32', sr(sC), hex(f2u(cval)))
    e.salu('s_mov_b32', sr(sThr), hex(f2u(opt.thr)))
    e.salu('s_mov_b32', sr(sHiMask), '0xffff0000')
    e.salu('s_mov_b32', sr(sValid), '0x00ff00ff'); e.salu('s_mov_b32', sr(sValid+1), '0x00ff00ff')
    e.salu('s_mov_b32', sr(sG1), '0xf0f0f0f0'); e.salu('s_mov_b32', sr(sG1+1), '0xf0f0f0f0')
    e.salu('s_lshl_b32', sr(sOffK), sr(sWave), '13')
    e.salu('s_lshl_b32', sr(sOffT), sr(sWave), '12')
    e.salu('s_lshl_b32', sr(sOffS), sr(sWave), '6')
    e.salu('s_mov_b32', sr(sOffV), sr(sOffK))
    t0,t1,t2=sTmp,sTmp+1,sTmp+2
    e.salu('s_lshl_b32', sr(t0), sr(sWG), '20')
    e.salu('s_lshl_b32', sr(t1), sr(sWG), '13')
    e.salu('s_and_b32', sr(t2), sr(sWG), '3')
    e.salu('s_lshl_b32', sr(t2), sr(t2), '19')
    e.wait(lgkm=0)
    def srd(d,p,off,size):
        e.salu('s_add_u32', sr(d), sr(p), sr(off))
        e.salu('s_addc_u32', sr(d+1), sr(p+1), '0')
        e.salu('s_mov_b32', sr(d+2), hex(size))
        e.salu('s_mov_b32', sr(d+3), '0x20000')
    srd(sK,pQK,t0,0x100000)
    e.salu('s_lshr_b32', sr(sTmp+3), sr(sWG), '2')
    e.salu('s_lshl_b32', sr(sTmp+4), sr(sTmp+3), '10')
    e.salu('s_add_u32', sr(pQ), sr(pQ), sr(sTmp+4)); e.salu('s_addc_u32', sr(pQ+1), sr(pQ+1), '0')
    qv=vCl
    for i,(p) in enumerate((pQ,pQC,pQS)):
        for h in range(2):
            d=qv+i*4+h*2
            e.vmem(f'global_load_dwordx2 {vr(d,2)}, {vr(vQo)}, {sr(p,2)} offset:{h*128}', w=vr(d,2), r=[vr(vQo),sr(p,2)])

    def issueK(slot):
        for t in range(4):
            for h in range(2):
                d=KR+slot*32+(t*2+h)*4
                e.vmem(f'buffer_load_dwordx4 {vr(d,4)}, {vr(vKo)}, {sr(sK,4)}, {sr(sOffK)} offen offset:{t*512+h*256}{NT}', w=vr(d,4), r=[vr(vKo),sr(sOffK)])
        e.salu('s_add_u32', sr(sOffK), sr(sOffK), '0x8000')
    def issueV(slot):
        for j in range(4):
            for h in range(2):
                d=VR+slot*32+(j*2+h)*4
                e.vmem(f'buffer_load_dwordx4 {vr(d,4)}, {vr(vVo)}, {sr(sV,4)}, {sr(sOffV)} offen offset:{j*512+h*256}{NT}', w=vr(d,4), r=[vr(vVo),sr(sOffV)])
        e.salu('s_add_u32', sr(sOffV), sr(sOffV), '0x8000')
    def issueT():
        for t in range(4):
            for h in range(2):
                for base,srdT in ((TC,sCos),(TS,sSin)):
                    d=base+(t*2+h)*2
                    e.vmem(f'buffer_load_dwordx2 {vr(d,2)}, {vr(vTo)}, {sr(srdT,4)}, {sr(sOffT)} offen offset:{t*256+h*128}', w=vr(d,2), r=[vr(vTo),sr(sOffT)])
        e.salu('s_add_u32', sr(sOffT), sr(sOffT), '0x4000')
        for i,(s_,vo) in enumerate(((sKs,vSK),(sKz,vSK),(sVs,vSV),(sVz,vSV))):
            d=SC+4*i
            e.vmem(f'buffer_load_dwordx4 {vr(d,4)}, {vr(vo)}, {sr(s_,4)}, {sr(sOffS)} offen', w=vr(d,4), r=[vr(vo),sr(sOffS)])
        e.salu('s_add_u32', sr(sOffS), sr(sOffS), '0x100')

    issueK(0)
    srd(sV,pQV,t0,0x100000)
    issueV(0)
    srd(sCos,pKC,t2,0x80000); srd(sSin,pKSn,t2,0x80000)
    srd(sKs,pKS,t1,0x2000); srd(sKz,pKZ,t1,0x2000); srd(sVs,pVS,t1,0x2000); srd(sVz,pVZ,t1,0x2000)
    issueT()
    issueK(1)
    issueV(1)
    e.valu('v_mov_b32', vr(vT0), '0')
    for i in range(36): e.valu('v_accvgpr_write_b32', ar(i), '0')
    e.valu('v_mov_b32', vr(vM), '0xff800000')
    e.valu('v_mov_b32', vr(vL), '0'); e.valu('v_mov_b32', vr(vL+1), '0')
    e.wait(vm=52)
    qt=vT0
    def unpack(dst,src):
        e.valu('v_lshlrev_b32', vr(dst), '16', vr(src))
        e.valu('v_and_b32', vr(dst+1), sr(sHiMask), vr(src))
    for i in range(2): unpack(qt+2*i, qv+i)
    for i in range(2): unpack(qt+4+2*i, qv+2+i)
    cq=vSp
    for i in range(2): unpack(cq+2*i, qv+4+i)
    for i in range(2): unpack(cq+4+2*i, qv+6+i)
    for i in range(2): unpack(cq+8+2*i, qv+8+i)
    for i in range(2): unpack(cq+12+2*i, qv+10+i)
    for c in range(4):
        e.valu('v_mul_f32', vr(cq+c), vr(qt+c), vr(cq+c))
        e.valu('v_mul_f32', vr(cq+4+c), vr(qt+4+c), vr(cq+4+c))
    for c in range(4):
        e.valu('v_fma_f32', vr(cq+c), f'-{vr(qt+4+c)}', vr(cq+8+c), vr(cq+c))
        e.valu('v_fma_f32', vr(cq+4+c), vr(qt+c), vr(cq+12+c), vr(cq+4+c))
    for i in range(4):
        e.valu('v_cvt_pk_bf16_f32', vr(qt+8+i), vr(cq+2*i), vr(cq+2*i+1))
    for i in range(4):
        e.valu('v_accvgpr_write_b32', ar(aQ+i), vr(qt+8+i))
    e.salu('s_mov_b32', sr(sCnt), str(opt.niter))
    e.settle()

    def stepA(slot):
        e.wait(vm=16)
        ks,kz,vs,vz=SC,SC+4,SC+8,SC+12
        for t in range(4):
            b=vSp+4*t
            e.valu('v_lshlrev_b32', vr(b), '16', vr(ks+t))
            e.valu('v_and_b32', vr(b+1), sr(sHiMask), vr(ks+t))
            e.valu('v_lshlrev_b32', vr(b+2), '16', vr(kz+t))
            e.valu('v_and_b32', vr(b+3), sr(sHiMask), vr(kz+t))
        for t in range(4):
            b=vSp+4*t
            e.valu('v_pk_mul_f32', vr(b+2,2), vr(b+2,2), vr(b,2), mods='neg_lo:[1,0] neg_hi:[1,0]')
        for t in range(4):
            L=KR+slot*32+(t*2)*4; H=L+4; b=vSp+4*t
            for c in range(4): e.valu('v_cvt_f32_i32', vr(L+c), vr(L+c))
            for c in range(4): e.valu('v_cvt_f32_i32', vr(H+c), vr(H+c))
            cl=TC+(t*2)*2; ch=cl+2; sl=TS+(t*2)*2; sh=sl+2
            for i in range(2): unpack(vCl+2*i, cl+i)
            for i in range(2): unpack(vCh+2*i, ch+i)
            for i in range(2):
                e.valu('v_pk_fma_f32', vr(L+2*i,2), vr(L+2*i,2), vr(b,2), vr(b+2,2), mods='op_sel_hi:[1,0,0]')
            for i in range(2):
                e.valu('v_pk_fma_f32', vr(H+2*i,2), vr(H+2*i,2), vr(b,2), vr(b+2,2), mods='op_sel:[0,1,1] op_sel_hi:[1,1,1]')
            for i in range(2): unpack(vSl+2*i, sl+i)
            for i in range(2): unpack(vSh+2*i, sh+i)
            for i in range(2): e.valu('v_pk_mul_f32', vr(vCl+2*i,2), vr(L+2*i,2), vr(vCl+2*i,2))
            for i in range(2): e.valu('v_pk_mul_f32', vr(vCh+2*i,2), vr(H+2*i,2), vr(vCh+2*i,2))
            for i in range(2): e.valu('v_pk_fma_f32', vr(vCl+2*i,2), vr(H+2*i,2), vr(vSl+2*i,2), vr(vCl+2*i,2), mods='neg_lo:[1,0,0] neg_hi:[1,0,0]')
            for i in range(2): e.valu('v_pk_fma_f32', vr(vCh+2*i,2), vr(L+2*i,2), vr(vSh+2*i,2), vr(vCh+2*i,2))
            e.valu('v_cvt_pk_bf16_f32', vr(vSl), vr(vCl), vr(vCl+1))
            e.valu('v_cvt_pk_bf16_f32', vr(vSl+1), vr(vCl+2), vr(vCl+3))
            e.valu('v_cvt_pk_bf16_f32', vr(vSl+2), vr(vCh), vr(vCh+1))
            e.valu('v_cvt_pk_bf16_f32', vr(vSl+3), vr(vCh+2), vr(vCh+3))
            e.mfma('v_mfma_f32_16x16x32_bf16', vr(L,4), vr(vSl,4), ar(aQ,4), '0')
        for j in range(4): e.valu('v_perm_b32', vr(vVs+j), vr(vs+j), vr(vs+j), vr(vSelG))
        e.valu('v_perm_b32', vr(vZ), vr(vz+1), vr(vz), vr(vSelZ))
        e.valu('v_perm_b32', vr(vZ+1), vr(vz+3), vr(vz+2), vr(vSelZ))
        Ds=[KR+slot*32+(t*2)*4 for t in range(4)]
        for t in range(4): e.valu('v_add_f32_dpp', vr(vU+t), vr(Ds[t]+1), vr(Ds[t]), mods='row_shl:4 row_mask:0xf bank_mask:0xf')
        for t in range(4): e.valu('v_add_f32_dpp', vr(vU+t), vr(Ds[t]+2), vr(vU+t), mods='row_shl:8 row_mask:0xf bank_mask:0xf')
        for t in range(4): e.valu('v_add_f32_dpp', vr(vU+t), vr(Ds[t]+3), vr(vU+t), mods='row_shl:12 row_mask:0xf bank_mask:0xf')
        for t in range(4): e.valu('v_mov_b32_dpp', vr(vU+t), vr(vU+t), mods='row_shr:4 row_mask:0xf bank_mask:0x2')
        X=vT0
        for t in range(4): e.valu('v_fma_f32', vr(X+t), vr(vU+t), sr(sC), f'-{vr(vM)}')
        e.valu('v_max3_f32', vr(vMx), vr(X), vr(X+1), vr(X+2))
        e.valu('v_max_f32', vr(vMx), vr(vMx), vr(X+3))
        e.valu('v_cmp_nle_f32', 'vcc', vr(vMx), vr(vT0+8))
        e.salu('s_and_b64', 'vcc', 'vcc', sr(sValid,2))
        e.salu('s_cbranch_scc1', f'L_rare{slot}')
        e.label(f'L_back{slot}')
        for t in range(4): e.valu('v_exp_f32', vr(X+t), vr(X+t))
        issueT()
        issueK(slot)
        e.valu('v_pk_add_f32', vr(vL,2), vr(vL,2), vr(X,2))
        e.valu('v_pk_mul_f32', vr(vVs,2), vr(vVs,2), vr(X,2))
        e.valu('v_pk_mul_f32', vr(vVs+2,2), vr(vVs+2,2), vr(X+2,2))
        e.valu('v_pk_add_f32', vr(vL,2), vr(vL,2), vr(X+2,2))
        e.valu('v_cvt_pk_bf16_f32', vr(vP), vr(vVs), vr(vVs+1))
        e.valu('v_cvt_pk_bf16_f32', vr(vP+1), vr(vVs+2), vr(vVs+3))
    def stepB(slot):
        R=lambda j,h,c: VR+slot*32+(j*2+h)*4+c
        e.mfma('v_mfma_f32_16x16x16_bf16', ar(aZ,4), vr(vZ,2), vr(vP,2), ar(aZ,4))
        k=0
        for h in range(2):
            for j in range(4):
                for c in range(4): e.valu('v_cvt_f32_i32', vr(R(j,h,c)), vr(R(j,h,c)))
            for c in range(4):
                a=vA+2*c
                e.valu('v_cvt_pk_bf16_f32', vr(a), vr(R(0,h,c)), vr(R(1,h,c)))
                e.valu('v_cvt_pk_bf16_f32', vr(a+1), vr(R(2,h,c)), vr(R(3,h,c)))
            for c in range(4):
                e.mfma('v_mfma_f32_16x16x16_bf16', ar(aO+(h*4+c)*4,4), vr(vA+2*c,2), vr(vP,2), ar(aO+(h*4+c)*4,4))
        issueV(slot)

    def rare(slot):
        X=vT0
        e.label(f'L_rare{slot}')
        e.settle(2)
        Y=vT0+4
        for t in range(4): e.valu('v_mul_f32', vr(Y+t), sr(sC), vr(vU+t))
        e.valu('v_max3_f32', vr(vMx), vr(Y), vr(Y+1), vr(Y+2))
        e.valu('v_max3_f32', vr(vMx), vr(vMx), vr(Y+3), vr(vM))
        t=vT0+9
        e.valu('v_mov_b32', vr(t), vr(vMx))
        e.valu('v_permlane16_swap_b32', vr(t), vr(vMx))
        e.valu('v_max_f32', vr(vMx), vr(vMx), vr(t))
        e.valu('v_mov_b32', vr(t), vr(vMx))
        e.valu('v_permlane32_swap_b32', vr(t), vr(vMx))
        e.valu('v_max_f32', vr(vMx), vr(vMx), vr(t))
        e.valu('v_sub_f32', vr(t), vr(vM), vr(vMx))
        e.valu('v_exp_f32', vr(t), vr(t))
        e.valu('v_mov_b32', vr(vM), vr(vMx))
        for tt in range(4): e.valu('v_sub_f32', vr(X+tt), vr(Y+tt), vr(vM))
        e.valu('v_mul_f32', vr(vL), vr(vL), vr(t)); e.valu('v_mul_f32', vr(vL+1), vr(vL+1), vr(t))
        for blk in range(0,36,4):
            for i in range(4): e.valu('v_accvgpr_read_b32', vr(Y+i), ar(blk+i))
            for i in range(4): e.valu('v_mul_f32', vr(Y+i), vr(Y+i), vr(t))
            for i in range(4): e.valu('v_accvgpr_write_b32', ar(blk+i), vr(Y+i))
        e.settle(2)
        e.salu('s_branch', f'L_back{slot}')

    e.valu('v_mov_b32', vr(vT0+8), sr(sThr))
    e.label('L_loop')
    e.settle()
    for slot in range(2):
        stepA(slot); stepB(slot)
    e.salu('s_sub_u32', sr(sCnt), sr(sCnt), '1')
    e.salu('s_cmp_lg_u32', sr(sCnt), '0')
    e.salu('s_cbranch_scc1', 'L_loop')

    e.settle(8)
    vO=KR
    e.wait(vm=0)
    e.valu('v_add_f32', vr(vL), vr(vL), vr(vL+1))
    t=vT0
    e.valu('v_mov_b32', vr(t), vr(vL))
    e.valu('v_permlane16_swap_b32', vr(t), vr(vL))
    e.valu('v_add_f32', vr(vL), vr(vL), vr(t))
    e.valu('v_mov_b32', vr(t), vr(vL))
    e.valu('v_permlane32_swap_b32', vr(t), vr(vL))
    e.valu('v_add_f32', vr(vL), vr(vL), vr(t))
    e.valu('v_accvgpr_read_b32', vr(t+1), ar(aZ)); e.valu('v_accvgpr_read_b32', vr(t+2), ar(aZ+1))
    e.valu('v_cndmask_b32', vr(t+1), vr(t+1), vr(t+2), sr(sG1,2))
    for c in range(4):
        for r in range(4):
            e.valu('v_accvgpr_read_b32', vr(vO+4*r+c), ar(aO+c*4+r))
            e.valu('v_accvgpr_read_b32', vr(vO+16+4*r+c), ar(aO+(4+c)*4+r))
    for i in range(16): e.valu('v_cndmask_b32', vr(vO+i), vr(vO+i), vr(vO+16+i), sr(sG1,2))
    for i in range(16): e.valu('v_sub_f32', vr(vO+i), vr(vO+i), vr(t+1))
    a=vT0+3
    e.valu('v_and_b32', vr(a), '3', vr(vLane)); e.valu('v_lshlrev_b32', vr(a), '9', vr(a))
    e.valu('v_bfe_u32', vr(a+1), vr(vLane), '2', '1'); e.valu('v_lshl_add_u32', vr(a), vr(a+1), '8', vr(a))
    e.valu('v_lshrrev_b32', vr(a+1), '4', vr(vLane)); e.valu('v_lshl_add_u32', vr(a), vr(a+1), '6', vr(a))
    e.salu('s_lshl_b32', sr(sTmp), sr(sWave), '11')
    e.valu('v_add_u32', vr(a), sr(sTmp), vr(a))
    e.salu('s_lshl_b32', sr(sTmp+1), sr(sWave), '5')
    e.salu('s_add_u32', sr(sTmp+1), sr(sTmp+1), '8192')
    e.valu('v_lshlrev_b32', vr(a+1), '3', vr(vLane)); e.valu('v_add_u32', vr(a+1), sr(sTmp+1), vr(a+1))
    e.valu('v_mov_b32', vr(vMx+0), vr(vM))
    e.valu('v_mov_b32', vr(vT0+6), vr(vM)); e.valu('v_mov_b32', vr(vT0+7), vr(vL))
    e.salu('s_mov_b64', 'exec', sr(sValid,2))
    for r in range(4):
        e.ds(f'ds_write_b128 {vr(a)}, {vr(vO+4*r,4)} offset:{16*r}', r=[vr(a),vr(vO+4*r,4)], ndw=4)
    e.salu('s_mov_b64', 'exec', '0xf')
    e.ds(f'ds_write_b64 {vr(a+1)}, {vr(vT0+6,2)}', r=[vr(a+1),vr(vT0+6,2)], ndw=2)
    e.salu('s_mov_b64', 'exec', '-1')
    e.wait(lgkm=0)
    e.salu('s_barrier')
    ml=VR; ov=VR+8
    e.salu('s_lshl_b32', sr(sTmp), sr(sWave), '3'); e.salu('s_add_u32', sr(sTmp), sr(sTmp), '8192')
    e.valu('v_mov_b32', vr(a), sr(sTmp))
    e.salu('s_lshl_b32', sr(sTmp+1), sr(sWave), '9')
    e.valu('v_lshlrev_b32', vr(a+1), '3', vr(vLane)); e.valu('v_add_u32', vr(a+1), sr(sTmp+1), vr(a+1))
    for w in range(4): e.ds(f'ds_read_b64 {vr(ml+2*w,2)}, {vr(a)} offset:{32*w}', w=vr(ml+2*w,2), r=vr(a))
    for w in range(4): e.ds(f'ds_read_b64 {vr(ov+2*w,2)}, {vr(a+1)} offset:{2048*w}', w=vr(ov+2*w,2), r=vr(a+1))
    def combine4(ml,ov,res):
        e.valu('v_max3_f32', vr(res), vr(ml), vr(ml+2), vr(ml+4))
        e.valu('v_max_f32', vr(res), vr(res), vr(ml+6))
        for w in range(4): e.valu('v_sub_f32', vr(ml+2*w), vr(ml+2*w), vr(res))
        for w in range(4): e.valu('v_exp_f32', vr(ml+2*w), vr(ml+2*w))
        e.valu('v_mul_f32', vr(res+1), vr(ml), vr(ml+1))
        e.valu('v_mul_f32', vr(res+2), vr(ml), vr(ov))
        e.valu('v_mul_f32', vr(res+3), vr(ml), vr(ov+1))
        for w in range(1,4):
            e.valu('v_fmac_f32', vr(res+1), vr(ml+2*w), vr(ml+2*w+1))
            e.valu('v_fmac_f32', vr(res+2), vr(ml+2*w), vr(ov+2*w))
            e.valu('v_fmac_f32', vr(res+3), vr(ml+2*w), vr(ov+2*w+1))
    res=VR+16
    e.wait(lgkm=0)
    combine4(ml,ov,res)
    e.salu('s_lshl_b32', sr(sTmp), sr(sWG), '12')
    e.salu('s_add_u32', sr(sTmp+2), sr(pWs), sr(sTmp)); e.salu('s_addc_u32', sr(sTmp+3), sr(pWs+1), '0')
    e.vmem(f'global_store_dwordx2 {vr(a+1)}, {vr(res+2,2)}, {sr(sTmp+2,2)} sc1', r=[vr(a+1),vr(res+2,2),sr(sTmp+2,2)], ndw=2)
    e.salu('s_lshl_b32', sr(sTmp), sr(sWave), '3'); e.salu('s_add_u32', sr(sTmp), sr(sTmp), '2048')
    e.valu('v_mov_b32', vr(a), sr(sTmp))
    e.salu('s_mov_b64', 'exec', '1')
    e.vmem(f'global_store_dwordx2 {vr(a)}, {vr(res,2)}, {sr(sTmp+2,2)} sc1', r=[vr(a),vr(res,2),sr(sTmp+2,2)], ndw=2)
    e.salu('s_mov_b64', 'exec', '-1')
    e.wait(vm=0)
    e.salu('s_barrier')
    e.salu('s_cmp_lg_u32', sr(sWave), '0')
    e.salu('s_cbranch_scc1', 'L_noatom')
    e.salu('s_lshr_b32', sr(sTmp), sr(sWG), '2'); e.salu('s_lshl_b32', sr(sTmp), sr(sTmp), '2')
    e.valu('v_mov_b32', vr(t), sr(sTmp)); e.valu('v_mov_b32', vr(t+1), '1')
    e.salu('s_mov_b64', 'exec', '1')
    e.vmem(f'global_atomic_add {vr(t+2)}, {vr(t)}, {vr(t+1)}, {sr(pDbg,2)} sc0 sc1', w=vr(t+2), r=[vr(t),vr(t+1),sr(pDbg,2)])
    e.wait(vm=0)
    e.valu('v_mov_b32', vr(t), '0x2100')
    e.ds(f'ds_write_b32 {vr(t)}, {vr(t+2)}', r=[vr(t),vr(t+2)])
    e.salu('s_mov_b64', 'exec', '-1')
    e.wait(lgkm=0)
    e.label('L_noatom')
    e.salu('s_barrier')
    e.valu('v_mov_b32', vr(t), '0x2100')
    e.ds(f'ds_read_b32 {vr(t+2)}, {vr(t)}', w=vr(t+2), r=vr(t))
    e.wait(lgkm=0)
    e.valu('v_readfirstlane_b32', sr(sTmp), vr(t+2))
    e.salu('s_cmp_lg_u32', sr(sTmp), '3')
    e.salu('s_cbranch_scc1', 'L_end')
    e.salu('s_and_b32', sr(sTmp), sr(sWG), '0xfffffffc'); e.salu('s_lshl_b32', sr(sTmp), sr(sTmp), '12')
    e.salu('s_add_u32', sr(sTmp+2), sr(pWs), sr(sTmp)); e.salu('s_addc_u32', sr(sTmp+3), sr(pWs+1), '0')
    e.salu('s_lshl_b32', sr(sTmp), sr(sWave), '3'); e.salu('s_add_u32', sr(sTmp), sr(sTmp), '2048')
    e.valu('v_mov_b32', vr(a), sr(sTmp))
    for w in range(4):
        e.salu('s_add_u32', sr(sTmp+4), sr(sTmp+2), str(4096*w)); e.salu('s_addc_u32', sr(sTmp+5), sr(sTmp+3), '0')
        e.vmem(f'global_load_dwordx2 {vr(ml+2*w,2)}, {vr(a)}, {sr(sTmp+4,2)} sc1', w=vr(ml+2*w,2), r=[vr(a),sr(sTmp+4,2)])
        e.vmem(f'global_load_dwordx2 {vr(ov+2*w,2)}, {vr(a+1)}, {sr(sTmp+4,2)} sc1', w=vr(ov+2*w,2), r=[vr(a+1),sr(sTmp+4,2)])
    e.wait(vm=0)
    combine4(ml,ov,res)
    e.valu('v_rcp_f32', vr(res+1), vr(res+1))
    e.valu('v_mul_f32', vr(res+2), vr(res+2), vr(res+1))
    e.valu('v_mul_f32', vr(res+3), vr(res+3), vr(res+1))
    e.valu('v_cvt_pk_bf16_f32', vr(res), vr(res+2), vr(res+3))
    e.salu('s_lshr_b32', sr(sTmp), sr(sWG), '2'); e.salu('s_lshl_b32', sr(sTmp), sr(sTmp), '10')
    e.salu('s_lshl_b32', sr(sTmp+1), sr(sWave), '8'); e.salu('s_add_u32', sr(sTmp), sr(sTmp), sr(sTmp+1))
    e.valu('v_lshlrev_b32', vr(a), '2', vr(vLane)); e.valu('v_add_u32', vr(a), sr(sTmp), vr(a))
    e.vmem(f'global_store_dword {vr(a)}, {vr(res)}, {sr(pOut,2)}', r=[vr(a),vr(res),sr(pOut,2)])
    e.salu('s_endpgm')
    for slot in range(2): rare(slot)
    e.label('L_end')
    e.salu('s_endpgm')
    A('.section .rodata,"a"')
    A('.p2align 6')
    A(f'.amdhsa_kernel {NAME}_kernel')
    A(f'  .amdhsa_next_free_vgpr {256+NAG}')
    A('  .amdhsa_next_free_sgpr 96')
    A('  .amdhsa_accum_offset 256')
    A('  .amdhsa_group_segment_fixed_size 0')
    A('  .amdhsa_kernarg_size 112')
    A('  .amdhsa_user_sgpr_count 2')
    A('  .amdhsa_user_sgpr_kernarg_segment_ptr 1')
    A('  .amdhsa_system_sgpr_workgroup_id_x 1')
    A('  .amdhsa_float_denorm_mode_32 3')
    A('.end_amdhsa_kernel')
    return e

if __name__=='__main__':
    ap=argparse.ArgumentParser()
    ap.add_argument('-o',default='cdna_kernels/'+NAME+'.s')
    ap.add_argument('--nt',type=int,default=1)
    ap.add_argument('--thr',type=float,default=8.0)
    ap.add_argument('--lds',type=int,default=8704)
    ap.add_argument('--niter',type=int,default=16)
    opt=ap.parse_args()
    e=build(opt)
    open(opt.o,'w').write(e.text())
    print('instructions',e.count,'nop states',e.nops,file=sys.stderr)
```

```python
import sys, math, argparse
from emit import Emitter
NAME='standalone__kv_cache_quant_pre_rope_vs_post_rope__sampling'

HEADER = open('cdna_kernels/'+NAME+'.s.ref').read().split('; Override launch geometry')[0]

def vr(a,n=1): return f'v{a}' if n==1 else f'v[{a}:{a+n-1}]'
def ar(a,n=1): return f'a{a}' if n==1 else f'a[{a}:{a+n-1}]'
def sr(a,n=1): return f's{a}' if n==1 else f's[{a}:{a+n-1}]'

def build(opt):
    e=Emitter()
    NT = ' nt' if opt.nt else ''
    fl=lambda x: (' '+x.replace('_',' ')) if x else ''
    TF,SF,QF=fl(opt.tflag),fl(opt.sflag),fl(opt.qflag)
    vLane=0
    vKo,vVo,vTo,vSK,vSV,vSelG,vSelZ = 1,2,3,4,5,6,7
    KR=8
    VR=72
    TC=136
    TS=152
    SC=168
    tmp=184
    vSp=tmp
    vCl=200; vCh=204; vSl=208; vSh=212
    vU=216
    vVs=220
    vP=224
    vZ=226
    vM=228
    vMx=229
    vL=230
    vA=232
    vT0=240
    aO=0
    aZ=32
    aQ=36
    NAG=40
    sK,sV,sCos,sSin,sKs,sKz,sVs,sVz = 8,12,16,20,24,28,32,36
    sPtr=40
    pQ,pQK,pKS,pKZ,pQV,pVS,pVZ,pQC,pQS,pKC,pKSn,pOut,pDbg,pWs = [sPtr+2*i for i in range(14)]
    sWave=68; sOffK=69; sOffV=70; sOffT=71; sOffS=72; sCnt=73
    sC=74; sThr=75; sHiMask=76
    sValid=78
    sG1=80
    sTmp=82
    sWG=2
    NWG=256

    sSt=88
    def stamp(i):
        if not opt.stamps or opt.prof: return
        if opt.clock:
            if i in (3,4): return
            if i==0: e.salu('s_memtime', sr(sSt+6,2))
            if i==5: e.salu('s_memtime', sr(sSt+8,2))
        e.salu('s_memrealtime', sr(sSt+2*i,2))
    def store_stamps():
        if not opt.stamps: return
        e.wait(lgkm=0)
        e.salu('s_mov_b64','exec','1')
        e.salu('s_lshl_b32', sr(sTmp), sr(sWG), '2'); e.salu('s_add_u32', sr(sTmp), sr(sTmp), sr(sWave)); e.salu('s_lshl_b32', sr(sTmp), sr(sTmp), '6')
        e.salu('s_add_u32', sr(sTmp), sr(sTmp), hex(16<<20))
        e.valu('v_mov_b32', vr(vT0), sr(sTmp))
        for i in range(6):
            e.valu('v_mov_b32', vr(vT0+2), sr(sSt+2*i)); e.valu('v_mov_b32', vr(vT0+3), sr(sSt+2*i+1))
            e.vmem(f'global_store_dwordx2 {vr(vT0)}, {vr(vT0+2,2)}, {sr(pWs,2)} offset:{8*i}', r=[vr(vT0),vr(vT0+2,2),sr(pWs,2)], ndw=2)
            e.raw('    s_nop 1')
    def prof(i):
        if not opt.prof: return
        e.salu('s_memtime', 's[84:85]')
        e.wait(lgkm=0)
        e.salu('s_sub_u32', 's86', 's84', 's100')
        e.salu('s_add_u32', sr(sSt+2*i), sr(sSt+2*i), 's86')
        e.salu('s_mov_b32', 's100', 's84')
    A=e.raw
    A(HEADER.rstrip())
    A('; Override launch geometry by editing the next line (default: block=256,')
    A(f'; @launch grid=({NWG},1,1) block=(256,1,1) lds={opt.lds}')
    A('.amdgcn_target "amdgcn-amd-amdhsa--gfx950"')
    A('.text')
    A(f'.globl {NAME}_kernel')
    A('.p2align 8')
    A(f'.type {NAME}_kernel,@function')
    A(f'{NAME}_kernel:')

    e.salu('s_cmp_ge_u32', sr(sWG), NWG)
    e.salu('s_cbranch_scc1','L_end')
    stamp(0)
    e.salu('s_load_dwordx16', sr(sPtr,16), 's[0:1]', '0')
    e.salu('s_load_dwordx8', sr(sPtr+16,8), 's[0:1]', '64')
    e.salu('s_load_dwordx4', sr(sPtr+24,4), 's[0:1]', '96')
    e.valu('v_lshrrev_b32', vr(vT0), '6', 'v0')
    e.valu('v_and_b32', vr(vLane), '63', 'v0')
    e.valu('v_readfirstlane_b32', sr(sWave), vr(vT0))
    f0,f1,f2 = vT0+1,vT0+2,vT0+3
    e.valu('v_and_b32', vr(f0), '3', vr(vLane))
    e.valu('v_bfe_u32', vr(f1), vr(vLane), '2', '2')
    e.valu('v_lshrrev_b32', vr(f2), '4', vr(vLane))
    e.valu('v_lshlrev_b32', vr(vKo), '11', vr(f1))
    e.valu('v_lshl_add_u32', vr(vKo), vr(f2), '6', vr(vKo))
    e.valu('v_lshl_add_u32', vr(vKo), vr(f0), '4', vr(vKo))
    e.valu('v_and_b32', vr(vT0+4), '15', vr(vLane))
    e.valu('v_lshlrev_b32', vr(vVo), '11', vr(f2))
    e.valu('v_lshl_add_u32', vr(vVo), vr(vT0+4), '4', vr(vVo))
    e.valu('v_lshlrev_b32', vr(vTo), '10', vr(f1))
    e.valu('v_lshl_add_u32', vr(vTo), vr(f2), '5', vr(vTo))
    e.valu('v_lshl_add_u32', vr(vTo), vr(f0), '3', vr(vTo))
    e.valu('v_lshlrev_b32', vr(vSK), '4', vr(f1))
    e.valu('v_lshlrev_b32', vr(vSV), '4', vr(f2))
    vQo=vT0+5
    e.valu('v_lshlrev_b32', vr(vQo), '8', vr(f0))
    e.valu('v_lshl_add_u32', vr(vQo), vr(f2), '5', vr(vQo))
    e.valu('v_lshl_add_u32', vr(vQo), vr(f1), '3', vr(vQo))
    e.valu('v_and_b32', vr(vT0+6), '1', vr(f1))
    e.valu('v_mul_u32_u24', vr(vT0+6), '0x20200', vr(vT0+6))
    e.valu('v_lshlrev_b32', vr(vT0+6), '8', vr(vT0+6))
    e.valu('v_add_u32', vr(vSelG), '0x01000c0c', vr(vT0+6))
    e.valu('v_and_b32', vr(vT0+6), '1', vr(vLane))
    e.valu('v_mul_u32_u24', vr(vT0+6), '0x20202', vr(vT0+6))
    e.valu('v_lshlrev_b32', vr(vT0+7), '8', vr(vT0+6))
    e.valu('v_and_b32', vr(vT0+6), '0xff', vr(vT0+6))
    e.valu('v_add_u32', vr(vT0+6), vr(vT0+6), vr(vT0+7))
    e.valu('v_add_u32', vr(vSelZ), '0x05040100', vr(vT0+6))
    cval = (1.0/math.sqrt(128.0))*math.log2(math.e)
    import struct
    f2u=lambda x: struct.unpack('<I',struct.pack('<f',x))[0]
    e.salu('s_mov_b32', sr(sC), hex(f2u(cval)))
    e.salu('s_mov_b32', sr(sThr), hex(f2u(opt.thr)))
    e.salu('s_mov_b32', sr(sHiMask), '0xffff0000')
    e.salu('s_mov_b32', sr(sValid), '0x00ff00ff'); e.salu('s_mov_b32', sr(sValid+1), '0x00ff00ff')
    e.salu('s_mov_b32', sr(sG1), '0xf0f0f0f0'); e.salu('s_mov_b32', sr(sG1+1), '0xf0f0f0f0')
    e.salu('s_lshl_b32', sr(sOffK), sr(sWave), '13')
    e.salu('s_lshl_b32', sr(sOffT), sr(sWave), '12')
    e.salu('s_lshl_b32', sr(sOffS), sr(sWave), '6')
    e.salu('s_mov_b32', sr(sOffV), sr(sOffK))
    t0,t1,t2=sTmp,sTmp+1,sTmp+2
    e.salu('s_lshl_b32', sr(t0), sr(sWG), '20')
    e.salu('s_lshl_b32', sr(t1), sr(sWG), '13')
    e.salu('s_and_b32', sr(t2), sr(sWG), '3')
    e.salu('s_lshl_b32', sr(t2), sr(t2), '19')
    e.wait(lgkm=0)
    def srd(d,p,off,size):
        e.salu('s_add_u32', sr(d), sr(p), sr(off))
        e.salu('s_addc_u32', sr(d+1), sr(p+1), '0')
        e.salu('s_mov_b32', sr(d+2), hex(size))
        e.salu('s_mov_b32', sr(d+3), '0x20000')
    srd(sK,pQK,t0,0x100000)
    e.salu('s_lshr_b32', sr(sTmp+3), sr(sWG), '2')
    e.salu('s_lshl_b32', sr(sTmp+4), sr(sTmp+3), '10')
    e.salu('s_add_u32', sr(pQ), sr(pQ), sr(sTmp+4)); e.salu('s_addc_u32', sr(pQ+1), sr(pQ+1), '0')
    qv=vCl
    for i,(p) in enumerate((pQ,pQC,pQS)):
        for h in range(2):
            d=qv+i*4+h*2
            e.vmem(f'global_load_dwordx2 {vr(d,2)}, {vr(vQo)}, {sr(p,2)} offset:{h*128}{QF}', w=vr(d,2), r=[vr(vQo),sr(p,2)])

    def issueK(slot):
        for t in range(4):
            for h in range(2):
                d=KR+slot*32+(t*2+h)*4
                e.vmem(f'buffer_load_dwordx4 {vr(d,4)}, {vr(vKo)}, {sr(sK,4)}, {sr(sOffK)} offen offset:{t*512+h*256}{NT}', w=vr(d,4), r=[vr(vKo),sr(sOffK)])
        e.salu('s_add_u32', sr(sOffK), sr(sOffK), '0x8000')
    def issueV(slot):
        for j in range(4):
            for h in range(2):
                d=VR+slot*32+(j*2+h)*4
                e.vmem(f'buffer_load_dwordx4 {vr(d,4)}, {vr(vVo)}, {sr(sV,4)}, {sr(sOffV)} offen offset:{j*512+h*256}{NT}', w=vr(d,4), r=[vr(vVo),sr(sOffV)])
        e.salu('s_add_u32', sr(sOffV), sr(sOffV), '0x8000')
    def issueT():
        for t in range(4):
            for h in range(2):
                for base,srdT in ((TC,sCos),(TS,sSin)):
                    d=base+(t*2+h)*2
                    e.vmem(f'buffer_load_dwordx2 {vr(d,2)}, {vr(vTo)}, {sr(srdT,4)}, {sr(sOffT)} offen offset:{t*256+h*128}{TF}', w=vr(d,2), r=[vr(vTo),sr(sOffT)])
        e.salu('s_add_u32', sr(sOffT), sr(sOffT), '0x4000')
        for i,(s_,vo) in enumerate(((sKs,vSK),(sKz,vSK),(sVs,vSV),(sVz,vSV))):
            d=SC+4*i
            e.vmem(f'buffer_load_dwordx4 {vr(d,4)}, {vr(vo)}, {sr(s_,4)}, {sr(sOffS)} offen{SF}', w=vr(d,4), r=[vr(vo),sr(sOffS)])
        e.salu('s_add_u32', sr(sOffS), sr(sOffS), '0x100')

    issueK(0)
    srd(sV,pQV,t0,0x100000)
    issueV(0)
    srd(sCos,pKC,t2,0x80000); srd(sSin,pKSn,t2,0x80000)
    srd(sKs,pKS,t1,0x2000); srd(sKz,pKZ,t1,0x2000); srd(sVs,pVS,t1,0x2000); srd(sVz,pVZ,t1,0x2000)
    issueT()
    issueK(1)
    issueV(1)
    e.valu('v_mov_b32', vr(vT0), '0')
    for i in range(36): e.valu('v_accvgpr_write_b32', ar(i), '0')
    e.valu('v_mov_b32', vr(vM), '0xff800000')
    e.valu('v_mov_b32', vr(vL), '0'); e.valu('v_mov_b32', vr(vL+1), '0')
    e.wait(vm=52)
    qt=vT0
    def unpack(dst,src):
        e.valu('v_lshlrev_b32', vr(dst), '16', vr(src))
        e.valu('v_and_b32', vr(dst+1), sr(sHiMask), vr(src))
    for i in range(2): unpack(qt+2*i, qv+i)
    for i in range(2): unpack(qt+4+2*i, qv+2+i)
    cq=vSp
    for i in range(2): unpack(cq+2*i, qv+4+i)
    for i in range(2): unpack(cq+4+2*i, qv+6+i)
    for i in range(2): unpack(cq+8+2*i, qv+8+i)
    for i in range(2): unpack(cq+12+2*i, qv+10+i)
    for c in range(4):
        e.valu('v_mul_f32', vr(cq+c), vr(qt+c), vr(cq+c))
        e.valu('v_mul_f32', vr(cq+4+c), vr(qt+4+c), vr(cq+4+c))
    for c in range(4):
        e.valu('v_fma_f32', vr(cq+c), f'-{vr(qt+4+c)}', vr(cq+8+c), vr(cq+c))
        e.valu('v_fma_f32', vr(cq+4+c), vr(qt+c), vr(cq+12+c), vr(cq+4+c))
    for i in range(4):
        e.valu('v_cvt_pk_bf16_f32', vr(qt+8+i), vr(cq+2*i), vr(cq+2*i+1))
    for i in range(4):
        e.valu('v_accvgpr_write_b32', ar(aQ+i), vr(qt+8+i))
    e.salu('s_mov_b32', sr(sCnt), str(opt.niter))
    e.settle()

    def stepA(slot):
        prof(5)
        e.wait(vm=16)
        prof(0)
        ks,kz,vs,vz=SC,SC+4,SC+8,SC+12
        for t in range(4):
            b=vSp+4*t
            e.valu('v_lshlrev_b32', vr(b), '16', vr(ks+t))
            e.valu('v_and_b32', vr(b+1), sr(sHiMask), vr(ks+t))
            e.valu('v_lshlrev_b32', vr(b+2), '16', vr(kz+t))
            e.valu('v_and_b32', vr(b+3), sr(sHiMask), vr(kz+t))
        for t in range(4):
            b=vSp+4*t
            e.valu('v_pk_mul_f32', vr(b+2,2), vr(b+2,2), vr(b,2), mods='neg_lo:[1,0] neg_hi:[1,0]')
        for t in range(4):
            L=KR+slot*32+(t*2)*4; H=L+4; b=vSp+4*t
            for c in range(4): e.valu('v_cvt_f32_i32', vr(L+c), vr(L+c))
            for c in range(4): e.valu('v_cvt_f32_i32', vr(H+c), vr(H+c))
            cl=TC+(t*2)*2; ch=cl+2; sl=TS+(t*2)*2; sh=sl+2
            for i in range(2): unpack(vCl+2*i, cl+i)
            for i in range(2): unpack(vCh+2*i, ch+i)
            for i in range(2):
                e.valu('v_pk_fma_f32', vr(L+2*i,2), vr(L+2*i,2), vr(b,2), vr(b+2,2), mods='op_sel_hi:[1,0,0]')
            for i in range(2):
                e.valu('v_pk_fma_f32', vr(H+2*i,2), vr(H+2*i,2), vr(b,2), vr(b+2,2), mods='op_sel:[0,1,1] op_sel_hi:[1,1,1]')
            for i in range(2): unpack(vSl+2*i, sl+i)
            for i in range(2): unpack(vSh+2*i, sh+i)
            for i in range(2): e.valu('v_pk_mul_f32', vr(vCl+2*i,2), vr(L+2*i,2), vr(vCl+2*i,2))
            for i in range(2): e.valu('v_pk_mul_f32', vr(vCh+2*i,2), vr(H+2*i,2), vr(vCh+2*i,2))
            for i in range(2): e.valu('v_pk_fma_f32', vr(vCl+2*i,2), vr(H+2*i,2), vr(vSl+2*i,2), vr(vCl+2*i,2), mods='neg_lo:[1,0,0] neg_hi:[1,0,0]')
            for i in range(2): e.valu('v_pk_fma_f32', vr(vCh+2*i,2), vr(L+2*i,2), vr(vSh+2*i,2), vr(vCh+2*i,2))
            e.valu('v_cvt_pk_bf16_f32', vr(vSl), vr(vCl), vr(vCl+1))
            e.valu('v_cvt_pk_bf16_f32', vr(vSl+1), vr(vCl+2), vr(vCl+3))
            e.valu('v_cvt_pk_bf16_f32', vr(vSl+2), vr(vCh), vr(vCh+1))
            e.valu('v_cvt_pk_bf16_f32', vr(vSl+3), vr(vCh+2), vr(vCh+3))
            e.mfma('v_mfma_f32_16x16x32_bf16', vr(L,4), vr(vSl,4), ar(aQ,4), '0')
        for j in range(4): e.valu('v_perm_b32', vr(vVs+j), vr(vs+j), vr(vs+j), vr(vSelG))
        e.valu('v_perm_b32', vr(vZ), vr(vz+1), vr(vz), vr(vSelZ))
        e.valu('v_perm_b32', vr(vZ+1), vr(vz+3), vr(vz+2), vr(vSelZ))
        Ds=[KR+slot*32+(t*2)*4 for t in range(4)]
        for t in range(4): e.valu('v_add_f32_dpp', vr(vU+t), vr(Ds[t]+1), vr(Ds[t]), mods='row_shl:4 row_mask:0xf bank_mask:0xf')
        for t in range(4): e.valu('v_add_f32_dpp', vr(vU+t), vr(Ds[t]+2), vr(vU+t), mods='row_shl:8 row_mask:0xf bank_mask:0xf')
        for t in range(4): e.valu('v_add_f32_dpp', vr(vU+t), vr(Ds[t]+3), vr(vU+t), mods='row_shl:12 row_mask:0xf bank_mask:0xf')
        for t in range(4): e.valu('v_mov_b32_dpp', vr(vU+t), vr(vU+t), mods='row_shr:4 row_mask:0xf bank_mask:0x2')
        X=vT0
        for t in range(4): e.valu('v_fma_f32', vr(X+t), vr(vU+t), sr(sC), f'-{vr(vM)}')
        e.valu('v_max3_f32', vr(vMx), vr(X), vr(X+1), vr(X+2))
        e.valu('v_max_f32', vr(vMx), vr(vMx), vr(X+3))
        e.valu('v_cmp_nle_f32', 'vcc', vr(vMx), vr(vT0+8))
        e.salu('s_and_b64', 'vcc', 'vcc', sr(sValid,2))
        e.salu('s_cbranch_scc1', f'L_rare{slot}')
        e.label(f'L_back{slot}')
        for t in range(4): e.valu('v_exp_f32', vr(X+t), vr(X+t))
        prof(1)
        issueT()
        issueK(slot)
        prof(2)
        e.valu('v_pk_add_f32', vr(vL,2), vr(vL,2), vr(X,2))
        e.valu('v_pk_mul_f32', vr(vVs,2), vr(vVs,2), vr(X,2))
        e.valu('v_pk_mul_f32', vr(vVs+2,2), vr(vVs+2,2), vr(X+2,2))
        e.valu('v_pk_add_f32', vr(vL,2), vr(vL,2), vr(X+2,2))
        e.valu('v_cvt_pk_bf16_f32', vr(vP), vr(vVs), vr(vVs+1))
        e.valu('v_cvt_pk_bf16_f32', vr(vP+1), vr(vVs+2), vr(vVs+3))
    def stepB(slot):
        R=lambda j,h,c: VR+slot*32+(j*2+h)*4+c
        e.mfma('v_mfma_f32_16x16x16_bf16', ar(aZ,4), vr(vZ,2), vr(vP,2), ar(aZ,4))
        k=0
        for h in range(2):
            for j in range(4):
                for c in range(4): e.valu('v_cvt_f32_i32', vr(R(j,h,c)), vr(R(j,h,c)))
            for c in range(4):
                a=vA+2*c
                e.valu('v_cvt_pk_bf16_f32', vr(a), vr(R(0,h,c)), vr(R(1,h,c)))
                e.valu('v_cvt_pk_bf16_f32', vr(a+1), vr(R(2,h,c)), vr(R(3,h,c)))
            for c in range(4):
                e.mfma('v_mfma_f32_16x16x16_bf16', ar(aO+(h*4+c)*4,4), vr(vA+2*c,2), vr(vP,2), ar(aO+(h*4+c)*4,4))
        prof(3)
        issueV(slot)
        prof(4)

    def rare(slot):
        X=vT0
        e.label(f'L_rare{slot}')
        e.settle(2)
        Y=vT0+4
        for t in range(4): e.valu('v_mul_f32', vr(Y+t), sr(sC), vr(vU+t))
        e.valu('v_max3_f32', vr(vMx), vr(Y), vr(Y+1), vr(Y+2))
        e.valu('v_max3_f32', vr(vMx), vr(vMx), vr(Y+3), vr(vM))
        t=vT0+9
        e.valu('v_mov_b32', vr(t), vr(vMx))
        e.valu('v_permlane16_swap_b32', vr(t), vr(vMx))
        e.valu('v_max_f32', vr(vMx), vr(vMx), vr(t))
        e.valu('v_mov_b32', vr(t), vr(vMx))
        e.valu('v_permlane32_swap_b32', vr(t), vr(vMx))
        e.valu('v_max_f32', vr(vMx), vr(vMx), vr(t))
        e.valu('v_sub_f32', vr(t), vr(vM), vr(vMx))
        e.valu('v_exp_f32', vr(t), vr(t))
        e.valu('v_mov_b32', vr(vM), vr(vMx))
        for tt in range(4): e.valu('v_sub_f32', vr(X+tt), vr(Y+tt), vr(vM))
        e.valu('v_mul_f32', vr(vL), vr(vL), vr(t)); e.valu('v_mul_f32', vr(vL+1), vr(vL+1), vr(t))
        for blk in range(0,36,4):
            for i in range(4): e.valu('v_accvgpr_read_b32', vr(Y+i), ar(blk+i))
            for i in range(4): e.valu('v_mul_f32', vr(Y+i), vr(Y+i), vr(t))
            for i in range(4): e.valu('v_accvgpr_write_b32', ar(blk+i), vr(Y+i))
        e.settle(2)
        e.salu('s_branch', f'L_back{slot}')

    e.valu('v_mov_b32', vr(vT0+8), sr(sThr))
    if opt.stamps:
        e.wait(vm=16); stamp(1)
    if opt.prof:
        for i in range(12): e.salu('s_mov_b32', sr(sSt+i), '0')
        e.salu('s_memtime', 's[84:85]'); e.wait(lgkm=0); e.salu('s_mov_b32','s100','s84')
    e.label('L_loop')
    e.settle()
    for slot in range(2):
        stepA(slot); stepB(slot)
    e.salu('s_sub_u32', sr(sCnt), sr(sCnt), '1')
    e.salu('s_cmp_lg_u32', sr(sCnt), '0')
    e.salu('s_cbranch_scc1', 'L_loop')

    stamp(2)
    e.settle(8)
    vO=KR
    e.wait(vm=0)
    e.valu('v_add_f32', vr(vL), vr(vL), vr(vL+1))
    t=vT0
    e.valu('v_mov_b32', vr(t), vr(vL))
    e.valu('v_permlane16_swap_b32', vr(t), vr(vL))
    e.valu('v_add_f32', vr(vL), vr(vL), vr(t))
    e.valu('v_mov_b32', vr(t), vr(vL))
    e.valu('v_permlane32_swap_b32', vr(t), vr(vL))
    e.valu('v_add_f32', vr(vL), vr(vL), vr(t))
    e.valu('v_accvgpr_read_b32', vr(t+1), ar(aZ)); e.valu('v_accvgpr_read_b32', vr(t+2), ar(aZ+1))
    e.valu('v_cndmask_b32', vr(t+1), vr(t+1), vr(t+2), sr(sG1,2))
    for c in range(4):
        for r in range(4):
            e.valu('v_accvgpr_read_b32', vr(vO+4*r+c), ar(aO+c*4+r))
            e.valu('v_accvgpr_read_b32', vr(vO+16+4*r+c), ar(aO+(4+c)*4+r))
    for i in range(16): e.valu('v_cndmask_b32', vr(vO+i), vr(vO+i), vr(vO+16+i), sr(sG1,2))
    for i in range(16): e.valu('v_sub_f32', vr(vO+i), vr(vO+i), vr(t+1))
    a=vT0+3
    e.valu('v_and_b32', vr(a), '3', vr(vLane)); e.valu('v_lshlrev_b32', vr(a), '9', vr(a))
    e.valu('v_bfe_u32', vr(a+1), vr(vLane), '2', '1'); e.valu('v_lshl_add_u32', vr(a), vr(a+1), '8', vr(a))
    e.valu('v_lshrrev_b32', vr(a+1), '4', vr(vLane)); e.valu('v_lshl_add_u32', vr(a), vr(a+1), '6', vr(a))
    e.salu('s_lshl_b32', sr(sTmp), sr(sWave), '11')
    e.valu('v_add_u32', vr(a), sr(sTmp), vr(a))
    e.salu('s_lshl_b32', sr(sTmp+1), sr(sWave), '5')
    e.salu('s_add_u32', sr(sTmp+1), sr(sTmp+1), '8192')
    e.valu('v_lshlrev_b32', vr(a+1), '3', vr(vLane)); e.valu('v_add_u32', vr(a+1), sr(sTmp+1), vr(a+1))
    e.valu('v_mov_b32', vr(vMx+0), vr(vM))
    e.valu('v_mov_b32', vr(vT0+6), vr(vM)); e.valu('v_mov_b32', vr(vT0+7), vr(vL))
    e.salu('s_mov_b64', 'exec', sr(sValid,2))
    for r in range(4):
        e.ds(f'ds_write_b128 {vr(a)}, {vr(vO+4*r,4)} offset:{16*r}', r=[vr(a),vr(vO+4*r,4)], ndw=4)
    e.salu('s_mov_b64', 'exec', '0xf')
    e.ds(f'ds_write_b64 {vr(a+1)}, {vr(vT0+6,2)}', r=[vr(a+1),vr(vT0+6,2)], ndw=2)
    e.salu('s_mov_b64', 'exec', '-1')
    e.wait(lgkm=0)
    e.salu('s_barrier')
    ml=VR; ov=VR+8
    e.salu('s_lshl_b32', sr(sTmp), sr(sWave), '3'); e.salu('s_add_u32', sr(sTmp), sr(sTmp), '8192')
    e.valu('v_mov_b32', vr(a), sr(sTmp))
    e.salu('s_lshl_b32', sr(sTmp+1), sr(sWave), '9')
    e.valu('v_lshlrev_b32', vr(a+1), '3', vr(vLane)); e.valu('v_add_u32', vr(a+1), sr(sTmp+1), vr(a+1))
    for w in range(4): e.ds(f'ds_read_b64 {vr(ml+2*w,2)}, {vr(a)} offset:{32*w}', w=vr(ml+2*w,2), r=vr(a))
    for w in range(4): e.ds(f'ds_read_b64 {vr(ov+2*w,2)}, {vr(a+1)} offset:{2048*w}', w=vr(ov+2*w,2), r=vr(a+1))
    def combine4(ml,ov,res):
        e.valu('v_max3_f32', vr(res), vr(ml), vr(ml+2), vr(ml+4))
        e.valu('v_max_f32', vr(res), vr(res), vr(ml+6))
        for w in range(4): e.valu('v_sub_f32', vr(ml+2*w), vr(ml+2*w), vr(res))
        for w in range(4): e.valu('v_exp_f32', vr(ml+2*w), vr(ml+2*w))
        e.valu('v_mul_f32', vr(res+1), vr(ml), vr(ml+1))
        e.valu('v_mul_f32', vr(res+2), vr(ml), vr(ov))
        e.valu('v_mul_f32', vr(res+3), vr(ml), vr(ov+1))
        for w in range(1,4):
            e.valu('v_fmac_f32', vr(res+1), vr(ml+2*w), vr(ml+2*w+1))
            e.valu('v_fmac_f32', vr(res+2), vr(ml+2*w), vr(ov+2*w))
            e.valu('v_fmac_f32', vr(res+3), vr(ml+2*w), vr(ov+2*w+1))
    res=VR+16
    e.wait(lgkm=0)
    combine4(ml,ov,res)
    e.salu('s_lshl_b32', sr(sTmp), sr(sWG), '12')
    e.salu('s_add_u32', sr(sTmp+2), sr(pWs), sr(sTmp)); e.salu('s_addc_u32', sr(sTmp+3), sr(pWs+1), '0')
    e.vmem(f'global_store_dwordx2 {vr(a+1)}, {vr(res+2,2)}, {sr(sTmp+2,2)} sc1', r=[vr(a+1),vr(res+2,2),sr(sTmp+2,2)], ndw=2)
    e.salu('s_lshl_b32', sr(sTmp), sr(sWave), '3'); e.salu('s_add_u32', sr(sTmp), sr(sTmp), '2048')
    e.valu('v_mov_b32', vr(a), sr(sTmp))
    e.salu('s_mov_b64', 'exec', '1')
    e.vmem(f'global_store_dwordx2 {vr(a)}, {vr(res,2)}, {sr(sTmp+2,2)} sc1', r=[vr(a),vr(res,2),sr(sTmp+2,2)], ndw=2)
    e.salu('s_mov_b64', 'exec', '-1')
    stamp(3)
    e.wait(vm=0)
    e.salu('s_barrier')
    e.salu('s_cmp_lg_u32', sr(sWave), '0')
    e.salu('s_cbranch_scc1', 'L_noatom')
    e.salu('s_lshr_b32', sr(sTmp), sr(sWG), '2'); e.salu('s_lshl_b32', sr(sTmp), sr(sTmp), '2')
    e.valu('v_mov_b32', vr(t), sr(sTmp)); e.valu('v_mov_b32', vr(t+1), '1')
    e.salu('s_mov_b64', 'exec', '1')
    e.vmem(f'global_atomic_add {vr(t+2)}, {vr(t)}, {vr(t+1)}, {sr(pDbg,2)} sc0 sc1', w=vr(t+2), r=[vr(t),vr(t+1),sr(pDbg,2)])
    e.wait(vm=0)
    e.valu('v_mov_b32', vr(t), '0x2100')
    e.ds(f'ds_write_b32 {vr(t)}, {vr(t+2)}', r=[vr(t),vr(t+2)])
    e.salu('s_mov_b64', 'exec', '-1')
    e.wait(lgkm=0)
    e.label('L_noatom')
    e.salu('s_barrier')
    e.valu('v_mov_b32', vr(t), '0x2100')
    e.ds(f'ds_read_b32 {vr(t+2)}, {vr(t)}', w=vr(t+2), r=vr(t))
    e.wait(lgkm=0)
    e.valu('v_readfirstlane_b32', sr(sTmp), vr(t+2))
    stamp(4)
    e.salu('s_cmp_lg_u32', sr(sTmp), '3')
    e.salu('s_cbranch_scc1', 'L_fin' if opt.stamps else 'L_end')
    e.salu('s_and_b32', sr(sTmp), sr(sWG), '0xfffffffc'); e.salu('s_lshl_b32', sr(sTmp), sr(sTmp), '12')
    e.salu('s_add_u32', sr(sTmp+2), sr(pWs), sr(sTmp)); e.salu('s_addc_u32', sr(sTmp+3), sr(pWs+1), '0')
    e.salu('s_lshl_b32', sr(sTmp), sr(sWave), '3'); e.salu('s_add_u32', sr(sTmp), sr(sTmp), '2048')
    e.valu('v_mov_b32', vr(a), sr(sTmp))
    for w in range(4):
        e.salu('s_add_u32', sr(sTmp+4), sr(sTmp+2), str(4096*w)); e.salu('s_addc_u32', sr(sTmp+5), sr(sTmp+3), '0')
        e.vmem(f'global_load_dwordx2 {vr(ml+2*w,2)}, {vr(a)}, {sr(sTmp+4,2)} sc1', w=vr(ml+2*w,2), r=[vr(a),sr(sTmp+4,2)])
        e.vmem(f'global_load_dwordx2 {vr(ov+2*w,2)}, {vr(a+1)}, {sr(sTmp+4,2)} sc1', w=vr(ov+2*w,2), r=[vr(a+1),sr(sTmp+4,2)])
    e.wait(vm=0)
    combine4(ml,ov,res)
    e.valu('v_rcp_f32', vr(res+1), vr(res+1))
    e.valu('v_mul_f32', vr(res+2), vr(res+2), vr(res+1))
    e.valu('v_mul_f32', vr(res+3), vr(res+3), vr(res+1))
    e.valu('v_cvt_pk_bf16_f32', vr(res), vr(res+2), vr(res+3))
    e.salu('s_lshr_b32', sr(sTmp), sr(sWG), '2'); e.salu('s_lshl_b32', sr(sTmp), sr(sTmp), '10')
    e.salu('s_lshl_b32', sr(sTmp+1), sr(sWave), '8'); e.salu('s_add_u32', sr(sTmp), sr(sTmp), sr(sTmp+1))
    e.valu('v_lshlrev_b32', vr(a), '2', vr(vLane)); e.valu('v_add_u32', vr(a), sr(sTmp), vr(a))
    e.vmem(f'global_store_dword {vr(a)}, {vr(res)}, {sr(pOut,2)}', r=[vr(a),vr(res),sr(pOut,2)])
    if opt.stamps:
        e.wait(vm=0)
        e.label('L_fin')
        stamp(5)
        store_stamps()
    e.salu('s_endpgm')
    for slot in range(2): rare(slot)
    e.label('L_end')
    e.salu('s_endpgm')
    A('.section .rodata,"a"')
    A('.p2align 6')
    A(f'.amdhsa_kernel {NAME}_kernel')
    A(f'  .amdhsa_next_free_vgpr {256+NAG}')
    A('  .amdhsa_next_free_sgpr 102')
    A('  .amdhsa_accum_offset 256')
    A('  .amdhsa_group_segment_fixed_size 0')
    A('  .amdhsa_kernarg_size 112')
    A('  .amdhsa_user_sgpr_count 2')
    A('  .amdhsa_user_sgpr_kernarg_segment_ptr 1')
    A('  .amdhsa_system_sgpr_workgroup_id_x 1')
    A('  .amdhsa_float_denorm_mode_32 3')
    A('.end_amdhsa_kernel')
    return e

if __name__=='__main__':
    ap=argparse.ArgumentParser()
    ap.add_argument('-o',default='cdna_kernels/'+NAME+'.s')
    ap.add_argument('--nt',type=int,default=1)
    ap.add_argument('--thr',type=float,default=8.0)
    ap.add_argument('--lds',type=int,default=8704)
    ap.add_argument('--niter',type=int,default=16)
    ap.add_argument('--stamps',type=int,default=0)
    ap.add_argument('--prof',type=int,default=0)
    ap.add_argument('--tflag',default='')
    ap.add_argument('--sflag',default='')
    ap.add_argument('--qflag',default='')
    ap.add_argument('--clock',type=int,default=0)
    opt=ap.parse_args()
    e=build(opt)
    open(opt.o,'w').write(e.text())
    print('instructions',e.count,'nop states',e.nops,file=sys.stderr)
```
